```python
import torch

def _softmax(x, axis=-1):
    return torch.softmax(x, dim=axis)
def _gelu(x):
    return torch.nn.functional.gelu(x, approximate="tanh")
def _silu(x):
    return torch.nn.functional.silu(x)
def _sigmoid(x):
    return torch.sigmoid(x)
def _layernorm(x, axis=-1, eps=1e-5):
    m = x.mean(dim=axis, keepdim=True)
    v = x.var(dim=axis, keepdim=True, unbiased=False)
    return (x - m) / torch.sqrt(v + eps)
def _scatter_add(tgt, idx, src, axis=0):
    return tgt.clone().index_add_(axis, idx, src)
def _segment_sum(src, seg, n):
    out = torch.zeros((n,) + src.shape[1:], dtype=src.dtype)
    return out.index_add_(0, seg, src)
def _pad(x, pw):
    flat = tuple(v for pair in reversed(pw) for v in pair)
    return torch.nn.functional.pad(x, flat)

kernel_name = 'standalone__geglu_ffn__prompt'

def setup_inputs():

    _w = (lambda a: (lambda t: t.to(torch.bfloat16) if t.is_floating_point() else t)(torch.as_tensor(a)))
    B, S, D, F = 1, 2048, 576, 4608
    return {
        "x": _w((lambda *s: torch.randn(*s, dtype=torch.bfloat16) * 0.05)(B, S, D)),
        "w_gate": _w((lambda *s: torch.randn(*s, dtype=torch.bfloat16) * 0.05)(D, F)),
        "w_up": _w((lambda *s: torch.randn(*s, dtype=torch.bfloat16) * 0.05)(D, F)),
        "w_down": _w((lambda *s: torch.randn(*s, dtype=torch.bfloat16) * 0.05)(F, D)),
    }

def reference(x, w_gate, w_up, w_down):
    return (_gelu(x @ w_gate) * (x @ w_up)) @ w_down
```

```python
def R(kind, lo, n=1):
    return [f"{kind}{i}" for i in range(lo, lo + n)]


def rng(kind, lo, n):
    if n == 1:
        return f"{kind}{lo}"
    return f"{kind}[{lo}:{lo + n - 1}]"


class Reg:
    def __init__(self, kind, lo, n=1):
        self.kind, self.lo, self.n = kind, lo, n

    def __str__(self):
        return rng(self.kind, self.lo, self.n)

    def regs(self):
        return R(self.kind, self.lo, self.n)

    def sub(self, off, n=1):
        assert off + n <= self.n, (off, n, self.n)
        return Reg(self.kind, self.lo + off, n)


def V(lo, n=1): return Reg('v', lo, n)
def A(lo, n=1): return Reg('a', lo, n)
def S(lo, n=1): return Reg('s', lo, n)


def regs_of(x):
    if isinstance(x, Reg):
        return x.regs()
    if isinstance(x, str):
        if x in ('m0', 'vcc', 'scc', 'exec'):
            return [x]
        return []
    return []


class Ins:
    __slots__ = ('text', 'kind', 'reads', 'writes', 'tag', 'passes', 'need', 'meta')

    def __init__(self, text, kind, reads=(), writes=(), tag=None, passes=0, need=None, meta=None):
        self.text = text
        self.kind = kind
        self.reads = list(reads)
        self.writes = list(writes)
        self.tag = tag
        self.passes = passes
        self.need = need
        self.meta = meta


def _rd(*xs):
    out = []
    for x in xs:
        out += regs_of(x)
    return out


def mfma32(d, a, b, c):
    cs = str(c) if isinstance(c, Reg) else str(c)
    return Ins(f"v_mfma_f32_32x32x16_bf16 {d}, {a}, {b}, {cs}", 'mfma', reads=_rd(a, b, c), writes=_rd(d), passes=8,
               meta=dict(a=_rd(a), b=_rd(b), c=_rd(c), d=_rd(d)))


def mfma16(d, a, b, c):
    cs = str(c)
    return Ins(f"v_mfma_f32_16x16x32_bf16 {d}, {a}, {b}, {cs}", 'mfma', reads=_rd(a, b, c), writes=_rd(d), passes=4,
               meta=dict(a=_rd(a), b=_rd(b), c=_rd(c), d=_rd(d)))


def valu(op, d, *srcs, trans=False, extra_writes=(), extra_reads=()):
    txt = f"{op} {d}, " + ", ".join(str(s) for s in srcs)
    return Ins(txt, 'trans' if trans else 'valu', reads=_rd(*srcs) + list(extra_reads), writes=_rd(d) + list(extra_writes))


def salu(op, d, *srcs, scc=True):
    txt = f"{op} {d}" + ("" if not srcs else ", " + ", ".join(str(s) for s in srcs))
    w = _rd(d) + (['scc'] if scc else [])
    return Ins(txt, 'salu', reads=_rd(*srcs), writes=w)


def scmp(op, a, b):
    return Ins(f"{op} {a}, {b}", 'salu', reads=_rd(a, b), writes=['scc'])


def ds_read(op, d, addr, offset=0):
    assert 0 <= offset < 65536, offset
    o = f" offset:{offset}" if offset else ""
    return Ins(f"{op} {d}, {addr}{o}", 'lds', reads=_rd(addr), writes=_rd(d))


def ds_write(op, addr, data, offset=0):
    assert 0 <= offset < 65536, offset
    o = f" offset:{offset}" if offset else ""
    return Ins(f"{op} {addr}, {data}{o}", 'ldsw', reads=_rd(addr, data))


def buf_load(op, d, voff, srd, soff, offset=0, flags=""):
    o = f" offset:{offset}" if offset else ""
    f = f" {flags}" if flags else ""
    return Ins(f"{op} {d}, {voff}, {srd}, {soff} offen{o}{f}", 'vload', reads=_rd(voff, srd, soff), writes=_rd(d))


def buf_store(op, data, voff, srd, soff, offset=0, flags="", tag=None):
    o = f" offset:{offset}" if offset else ""
    f = f" {flags}" if flags else ""
    return Ins(f"{op} {data}, {voff}, {srd}, {soff} offen{o}{f}", 'vstore', reads=_rd(data, voff, srd, soff), tag=tag,
               meta=dict(data=_rd(data)))


def dma(voff, srd, soff, tag, flags="", op="buffer_load_dwordx4"):
    f = f" {flags}" if flags else ""
    return Ins(f"{op} {voff}, {srd}, {soff} offen{f} lds", 'dma', reads=_rd(voff, srd, soff) + ['m0'], tag=tag)


def need_vm(tags):
    return Ins("", 'needvm', need=set(tags) if not isinstance(tags, str) else {tags})


def wait_lgkm0():
    return Ins("", 'lgkm0')


def wait_vm0():
    return Ins("", 'vm0')


def barrier():
    return Ins("s_barrier", 'barrier')


def raw(text, reads=(), writes=(), kind='raw'):
    return Ins(text, kind, reads=reads, writes=writes)


def comment(t):
    return Ins(f"; {t}", 'comment')


def nop(n):
    return Ins(f"s_nop {n}", 'nop', meta=n)


class Emitter:
    def __init__(self):
        self.lines = []
        self.pos = 0
        self.lgkm = []
        self.vm = []
        self.last_mfma_write = {}
        self.last_mfma_c = {}
        self.last_valu_write = {}
        self.last_trans_write = {}
        self.last_salu_write = {}
        self.last_valu_sgpr_write = {}
        self.last_store_data = {}
        self.stats = {}
        self.last_mfma_write_range = {}
        self.nops_inserted = 0
        self.waits = 0

    def out(self, s):
        self.lines.append("    " + s)

    def _emit_nop(self, n):
        while n > 0:
            k = min(n, 16)
            self.out(f"s_nop {k - 1}")
            self.pos += k
            self.nops_inserted += k
            n -= k

    def _waitcnt(self, vm=None, lgkm=None):
        parts = []
        if vm is not None:
            parts.append(f"vmcnt({vm})")
        if lgkm is not None:
            parts.append(f"lgkmcnt({lgkm})")
        if parts:
            self.out("s_waitcnt " + " ".join(parts))
            self.pos += 1
            self.waits += 1

    def _need_counts(self, ins):
        touched = set(ins.reads) | set(ins.writes)
        lg = None
        for i, w in enumerate(self.lgkm):
            if w & touched:
                lg = len(self.lgkm) - i - 1
        vm = None
        for i, (tag, w) in enumerate(self.vm):
            if w & touched:
                vm = len(self.vm) - i - 1
        return vm, lg

    def _retire(self, vm, lg):
        if vm is not None:
            self.vm = self.vm[len(self.vm) - vm:] if vm > 0 else []
        if lg is not None:
            self.lgkm = self.lgkm[len(self.lgkm) - lg:] if lg > 0 else []

    def do_wait(self, vm, lg):
        if vm is not None:
            vm = min(vm, 63)
            if vm >= len(self.vm):
                vm = None
        if lg is not None:
            lg = min(lg, 15)
            if lg >= len(self.lgkm):
                lg = None
        if vm is None and lg is None:
            return
        self._waitcnt(vm, lg)
        self._retire(vm, lg)

    def emit(self, ins):
        k = ins.kind
        if k == 'comment':
            self.out(ins.text)
            return
        if k == 'label':
            self.lines.append(ins.text)
            return
        if k == 'needvm':
            vm = None
            for i, (tag, w) in enumerate(self.vm):
                if tag in ins.need:
                    vm = len(self.vm) - i - 1
            lg = 0 if ins.meta == 'lgkm0' else None
            self.do_wait(vm, lg)
            return
        if k == 'lgkm0':
            self.do_wait(None, 0)
            return
        if k == 'vm0':
            self.do_wait(0, None)
            return
        if k == 'nop':
            self.out(ins.text)
            self.pos += ins.meta + 1
            return
        vm, lg = self._need_counts(ins)
        self.do_wait(vm, lg)
        need = 0
        def req(p):
            nonlocal need
            need = max(need, p)
        rd, wr = ins.reads, ins.writes
        if k == 'mfma':
            m = ins.meta
            for r in m['a'] + m['b']:
                if r in self.last_mfma_write:
                    p, ps = self.last_mfma_write[r]
                    req(p + 1 + {2: 5, 4: 8, 8: 12, 16: 20}[ps])
            for r in m['c']:
                if r in self.last_mfma_write:
                    p, ps, = self.last_mfma_write[r][:2]
                    exact = self.last_mfma_write_range.get(r) == tuple(m['c']) and ps == ins.passes
                    if exact:
                        req(p + 1 + (2 if ps == 2 else 0))
                    else:
                        req(p + 1 + {2: 4, 4: 6, 8: 10, 16: 18}[ps])
            for r in rd:
                if r in self.last_valu_write:
                    req(self.last_valu_write[r] + 1 + 2)
            for r in m['d']:
                if r not in m['c'] and r in self.last_mfma_write:
                    p, ps = self.last_mfma_write[r][:2]
                    req(p + 1 + {2: 4, 4: 6, 8: 10, 16: 18}[ps])
        else:
            touched = rd + wr
            if k in ('valu', 'trans', 'vload', 'vstore', 'dma', 'lds', 'ldsw', 'raw'):
                for r in touched:
                    if r in self.last_mfma_write:
                        p, ps = self.last_mfma_write[r][:2]
                        req(p + 1 + {2: 5, 4: 8, 8: 12, 16: 20}[ps])
            if k in ('valu', 'trans'):
                for r in wr:
                    if r in self.last_mfma_c:
                        p, ps = self.last_mfma_c[r]
                        req(p + 1 + {2: 1, 4: 3, 8: 7, 16: 15}[ps])
                    if r in self.last_store_data:
                        req(self.last_store_data[r] + 1 + 2)
                if k == 'valu':
                    for r in rd:
                        if r in self.last_trans_write:
                            req(self.last_trans_write[r] + 1 + 1)
                for r in rd:
                    if r in self.last_valu_sgpr_write:
                        req(self.last_valu_sgpr_write[r] + 1 + 2)
                if 'readfirstlane' in ins.text or 'readlane' in ins.text:
                    for r in rd:
                        if r in self.last_valu_write:
                            req(self.last_valu_write[r] + 1 + 1)
                if 'permlane' in ins.text:
                    for r in touched:
                        if r in self.last_valu_write:
                            req(self.last_valu_write[r] + 1 + 2)
            if k in ('lds', 'vload'):
                for r in wr:
                    if r in self.last_store_data:
                        req(self.last_store_data[r] + 1 + 1)
            if k in ('vload', 'vstore', 'dma'):
                for r in rd:
                    if r in self.last_valu_sgpr_write:
                        req(self.last_valu_sgpr_write[r] + 1 + 5)
            if k == 'dma':
                if 'm0' in self.last_salu_write:
                    req(self.last_salu_write['m0'] + 1 + 1)
            if k == 'salu':
                for r in rd:
                    if r in self.last_valu_sgpr_write:
                        req(self.last_valu_sgpr_write[r] + 1 + 4)
        if need > self.pos:
            self._emit_nop(need - self.pos)
        self.out(ins.text)
        mypos = self.pos
        self.pos += 1
        self.stats[k] = self.stats.get(k, 0) + 1
        if k == 'mfma':
            m = ins.meta
            for r in m['d']:
                self.last_mfma_write[r] = (mypos, ins.passes)
                self.last_mfma_write_range[r] = tuple(m['d'])
            for r in m['c']:
                self.last_mfma_c[r] = (mypos, ins.passes)
        elif k in ('valu', 'trans'):
            for r in wr:
                if r[0] == 's' or r == 'vcc':
                    self.last_valu_sgpr_write[r] = mypos
                else:
                    self.last_valu_write[r] = mypos
                    if k == 'trans':
                        self.last_trans_write[r] = mypos
                    else:
                        self.last_trans_write.pop(r, None)
                    self.last_mfma_write.pop(r, None)
        elif k == 'salu':
            for r in wr:
                self.last_salu_write[r] = mypos
                self.last_valu_sgpr_write.pop(r, None)
        elif k == 'lds':
            self.lgkm.append(set(wr))
            for r in wr:
                self.last_mfma_write.pop(r, None)
                self.last_valu_write.pop(r, None)
                self.last_trans_write.pop(r, None)
        elif k == 'ldsw':
            self.lgkm.append(set())
        elif k == 'vload':
            self.vm.append((ins.tag, set(wr)))
            for r in wr:
                self.last_mfma_write.pop(r, None)
                self.last_valu_write.pop(r, None)
                self.last_trans_write.pop(r, None)
        elif k == 'vstore':
            self.vm.append((ins.tag, set()))
            if len(ins.meta['data']) >= 3:
                for r in ins.meta['data']:
                    self.last_store_data[r] = mypos
        elif k == 'dma':
            self.vm.append((ins.tag, set()))
        assert len(self.vm) <= 63 or True

    def emit_all(self, lst):
        for i in lst:
            self.emit(i)

    def text(self):
        return "\n".join(self.lines) + "\n"
```

```python
from asmlib import *
import struct, math

LOG2E = 1.4426950408889634
C_GELU = math.sqrt(2.0 / math.pi)
C0 = -2.0 * C_GELU * LOG2E
C1 = C0 * 0.044715


def f2u(f):
    return struct.unpack('<I', struct.pack('<f', f))[0]


SLOT = 49664
XS = 32768
WBLK = 4224
SPARE = 3 * SLOT
PDB = 4224
LDB = 4608
LDS_BYTES = 163840


def alpha_addr(n):
    if n < 3:
        return SPARE + n * PDB
    if n < 14:
        return (n - 3) * PDB
    return SLOT + (n - 14) * PDB


def beta_addr(n):
    if n < 7:
        return SLOT + 4 * PDB + n * PDB
    return 2 * SLOT + (n - 7) * PDB


def lone_addr(n):
    return n * LDB


assert alpha_addr(2) + PDB <= LDS_BYTES
assert beta_addr(6) + PDB <= 2 * SLOT and beta_addr(17) + PDB <= 3 * SLOT

def ACC(s, mt):
    return V(32 * s + 16 * mt, 16)


def XF(mt, ks):
    if ks < 32:
        return A((ks * 2 + mt) * 4, 4)
    return V(160 + ((ks - 32) * 2 + mt) * 4, 4)


def AF1(par, u):
    return V(128 + par * 16 + u * 4, 4)


def AR4(i):
    return V(192 + 4 * (i % 4), 4)


TMP = 208
HP = 224
vXR = [V(232 + i) for i in range(4)]
vAR = V(236)
vPR = [V(237), V(238), V(239)]
vXe, vXo, vW, vP, vL, vH = V(240), V(241), V(242), V(243), V(244), V(245)
vC0, vC1 = V(246), V(247)
vLR = V(248)
vXR2 = [V(TMP + i) for i in range(4)]
vAR2 = V(TMP + 4)

sX, sG, sU, sWsel, sH = S(8, 4), S(12, 4), S(16, 4), S(20, 4), S(24, 4)
sWave = S(28)
sXrow, sXlds, sWoff, sWlds = S(29), S(30), S(31), S(32)
sPoff, sPlds, sLoff, sLlds = S(33), S(34), S(35), S(36)
sH0, sH8 = S(37), S(38)
sT = [S(40 + i) for i in range(8)]
STAMP0 = 48

UNIT_SET = [0, 1, 2, 3, 4, 0, 1, 2, 3]


def gelu_ops(unit, mt, opts, hp):
    acc = ACC(UNIT_SET[unit], mt)
    ops = []
    H = V(HP + 4 * hp, 4)
    for grp in range(2):
        T = [V(TMP + 4 * ((2 * hp + grp) % 4) + j) for j in range(4)]
        g = [acc.sub(4 * grp + j) for j in range(4)]
        u = [acc.sub(8 + 4 * grp + j) for j in range(4)]
        for j in range(4): ops.append(valu("v_mul_f32", T[j], g[j], g[j]))
        for j in range(4): ops.append(valu("v_fma_f32", T[j], T[j], vC1, vC0))
        for j in range(4): ops.append(valu("v_mul_f32", T[j], g[j], T[j]))
        for j in range(4): ops.append(valu("v_exp_f32", T[j], T[j], trans=True))
        for j in range(4): ops.append(valu("v_mul_f32", u[j], g[j], u[j]))
        for j in range(4): ops.append(valu("v_add_f32", T[j], "1.0", T[j]))
        for j in range(4): ops.append(valu("v_rcp_f32", T[j], T[j], trans=True))
        for j in range(4): ops.append(valu("v_mul_f32", u[j], u[j], T[j]))
        ops.append(valu("v_cvt_pk_bf16_f32", H.sub(2 * grp), u[0], u[1]))
        ops.append(valu("v_cvt_pk_bf16_f32", H.sub(2 * grp + 1), u[2], u[3]))
    st = sT[4 + hp]
    if unit < 8:
        ops.append(salu("s_add_u32", st, sH0, mt * 2 * 147456 + unit * 512))
    else:
        ops.append(salu("s_add_u32", st, sH8, mt * 2 * 147456))
    ops.append(buf_store("buffer_store_dwordx4", H, vH, sH, st, flags=opts.get('hflags', ''), tag='st'))
    return ops


def gen_k1(opts):
    e = Emitter()
    E = e.emit
    stamps = opts.get('stamps', False)
    nst = [0]

    def stamp():
        if not stamps:
            return []
        i = nst[0]
        nst[0] += 1
        return [raw(f"s_memtime s[{STAMP0 + 2 * i}:{STAMP0 + 2 * i + 1}]", kind='salu')]

    E(raw("s_cmp_ge_u32 s2, 256", kind='salu'))
    E(raw("s_cbranch_scc1 L_k1_end", kind='salu'))
    E(raw("s_load_dwordx2 s[8:9], s[0:1], 0", kind='salu'))
    E(raw("s_load_dwordx2 s[12:13], s[0:1], 8", kind='salu'))
    E(raw("s_load_dwordx2 s[16:17], s[0:1], 16", kind='salu'))
    E(raw("s_load_dwordx2 s[24:25], s[0:1], 48", kind='salu'))
    if stamps:
        for i in stamp(): E(i)
    v0 = V(0)
    vl, va, vb, vc, vd = V(250), V(251), V(252), V(253), V(254)
    E(valu("v_lshrrev_b32", va, 6, v0))
    E(valu("v_and_b32", vl, 63, v0))
    E(valu("v_readfirstlane_b32", sWave, va))
    sa, sb, sj, si = S(3), S(4), S(5), S(39)
    E(salu("s_and_b32", sT[0], S(2), 7))
    E(salu("s_lshr_b32", sa, sT[0], 1))
    E(salu("s_and_b32", sb, sT[0], 1))
    E(salu("s_lshr_b32", sT[1], S(2), 3))
    E(salu("s_and_b32", si, sT[1], 3))
    E(salu("s_lshr_b32", sj, sT[1], 2))
    E(salu("s_lshl_b32", sT[0], sb, 2))
    E(salu("s_add_u32", sT[0], sT[0], si))
    E(salu("s_lshl_b32", sT[0], sT[0], 8))
    E(salu("s_lshl_b32", sT[1], sWave, 6))
    E(salu("s_add_u32", sT[0], sT[0], sT[1]))
    E(salu("s_mul_i32", sXrow, sT[0], 1152, scc=False))
    E(salu("s_lshl_b32", sXlds, sWave, 13))
    E(salu("s_mul_i32", sT[2], sa, 18, scc=False))
    E(salu("s_lshl_b32", sT[3], sj, 1))
    E(salu("s_add_u32", sT[2], sT[2], sT[3]))
    E(salu("s_lshl_b32", sT[2], sT[2], 7))
    E(salu("s_mul_i32", sT[3], sWave, 16 * 9216, scc=False))
    E(salu("s_add_u32", sWoff, sT[2], sT[3]))
    E(salu("s_mul_i32", sT[3], sWave, WBLK, scc=False))
    E(salu("s_add_u32", sWlds, sT[3], XS))
    E(valu("v_lshrrev_b32", va, 3, vl))
    E(valu("v_and_b32", vb, 7, vl))
    E(valu("v_lshrrev_b32", vc, 1, va))
    E(valu("v_xor_b32", vd, vb, vc))
    E(valu("v_lshlrev_b32", vd, 4, vd))
    E(valu("v_mul_u32_u24", vXe, 1152, va))
    E(valu("v_add_u32", vXe, vXe, vd))
    E(valu("v_xor_b32", vXo, 64, vXe))
    E(valu("v_and_b32", vd, 1, va))
    E(valu("v_lshl_add_u32", vd, vc, 2, vd))
    E(valu("v_mul_u32_u24", vW, 9216, vd))
    E(valu("v_lshl_add_u32", vW, vb, 4, vW))
    E(raw("s_waitcnt lgkmcnt(0)", kind='salu'))
    for srd, nbytes in ((sX, 2359296), (sG, 5308416), (sU, 5308416), (sH, 18874368)):
        E(salu("s_and_b32", srd.sub(1), srd.sub(1), "0xffff"))
        E(salu("s_mov_b32", srd.sub(2), nbytes, scc=False))
        E(salu("s_mov_b32", srd.sub(3), "0x00020000", scc=False))

    def x_dma(c, i):
        slot = c % 3
        return [salu("s_add_u32", "m0", sXlds, slot * SLOT + i * 1024),
                salu("s_add_u32", sT[i % 2], sXrow, i * 9216 + c * 128),
                dma(vXe if i % 2 == 0 else vXo, sX, sT[i % 2], tag=f"c{c}")]

    def w_dma(c, n):
        slot = c % 3
        t, mat = n & 1, n >> 1
        return [salu("s_add_u32", "m0", sWlds, slot * SLOT + n * 1056),
                salu("s_add_u32", sT[2 + n % 2], sWoff, (64 * c + 2 * t) * 9216),
                dma(vW, sU if mat else sG, sT[2 + n % 2], tag=f"c{c}")]

    def chunk_dmas(c):
        out = []
        seq = [('w', 0), ('x', 0), ('x', 1), ('w', 1), ('x', 2), ('x', 3), ('w', 2), ('x', 4), ('x', 5), ('w', 3), ('x', 6), ('x', 7)]
        for k, i in seq:
            out.append(w_dma(c, i) if k == 'w' else x_dma(c, i))
        return out

    def pair_dma(which, n):
        addr = alpha_addr(n) if which == 'a' else beta_addr(n)
        col = 0 if which == 'a' else 64
        return [salu("s_add_u32", "m0", sPlds, addr),
                salu("s_add_u32", sT[n % 2], sPoff, n * 2 * 147456 + col),
                dma(vP, sWsel, sT[n % 2], tag=f"{which}{n}")]

    def lone_dma(n):
        return [salu("s_add_u32", "m0", sLlds, lone_addr(n)),
                salu("s_add_u32", sT[n % 2], sLoff, n * 2 * 294912),
                dma(vL, sWsel, sT[n % 2], tag=f"l{n}")]

    for grp in chunk_dmas(0):
        for i in grp: E(i)
    for grp in chunk_dmas(1):
        for i in grp: E(i)
    E(salu("s_and_b32", sT[4], sWave, 1))
    E(scmp("s_cmp_eq_u32", sT[4], 0))
    E(raw(f"s_cselect_b32 {sWsel.sub(0)}, {sG.sub(0)}, {sU.sub(0)}", reads=['scc'], kind='salu'))
    E(raw(f"s_cselect_b32 {sWsel.sub(1)}, {sG.sub(1)}, {sU.sub(1)}", reads=['scc'], kind='salu'))
    E(salu("s_mov_b32", sWsel.sub(2), 5308416, scc=False))
    E(salu("s_mov_b32", sWsel.sub(3), "0x00020000", scc=False))
    E(salu("s_mul_i32", sT[5], sa, 18, scc=False))
    E(salu("s_lshl_b32", sT[6], sj, 1))
    E(salu("s_add_u32", sT[5], sT[5], sT[6]))
    E(salu("s_lshl_b32", sT[5], sT[5], 7))
    E(salu("s_lshr_b32", sT[6], sWave, 1))
    E(salu("s_mul_i32", sT[7], sT[6], 147456, scc=False))
    E(salu("s_add_u32", sPoff, sT[5], sT[7]))
    E(salu("s_add_u32", sPoff, sPoff, 128))
    E(salu("s_mul_i32", sT[7], sT[6], 2112, scc=False))
    E(salu("s_mul_i32", sPlds, sT[4], 1056, scc=False))
    E(salu("s_add_u32", sPlds, sPlds, sT[7]))
    E(salu("s_mul_i32", sT[5], sa, 72, scc=False))
    E(salu("s_add_u32", sT[7], sT[5], sj))
    E(salu("s_add_u32", sT[7], sT[7], 64))
    E(salu("s_lshl_b32", sLoff, sT[7], 5))
    E(salu("s_mul_i32", sLlds, sT[6], 294912, scc=False))
    E(salu("s_add_u32", sLoff, sLoff, sLlds))
    E(salu("s_mul_i32", sLlds, sT[6], 2304, scc=False))
    E(salu("s_mul_i32", sT[6], sT[4], 1152, scc=False))
    E(salu("s_add_u32", sLlds, sLlds, sT[6]))
    E(salu("s_lshl_b32", sT[4], sb, 2))
    E(salu("s_add_u32", sT[4], sT[4], si))
    E(salu("s_lshl_b32", sT[4], sT[4], 4))
    E(salu("s_lshl_b32", sT[6], sWave, 2))
    E(salu("s_add_u32", sT[4], sT[4], sT[6]))
    E(salu("s_mul_i32", sT[4], sT[4], 147456, scc=False))
    E(salu("s_lshl_b32", sT[7], sT[7], 9))
    E(salu("s_add_u32", sH8, sT[4], sT[7]))
    E(salu("s_lshl_b32", sT[6], sj, 3))
    E(salu("s_add_u32", sT[5], sT[5], sT[6]))
    E(salu("s_lshl_b32", sT[5], sT[5], 9))
    E(salu("s_add_u32", sH0, sT[4], sT[5]))
    for grp in chunk_dmas(2):
        for i in grp: E(i)
    vm, vh = V(200), V(201)
    E(valu("v_and_b32", vm, 31, vl))
    E(valu("v_lshrrev_b32", vh, 5, vl))
    E(valu("v_bfe_u32", va, vm, 1, 3))
    E(valu("v_lshlrev_b32", vb, 7, vm))
    E(valu("v_add_u32", vb, sXlds, vb))
    for ks in range(4):
        E(valu("v_add_u32", vc, 2 * ks, vh))
        E(valu("v_xor_b32", vc, vc, va))
        E(valu("v_lshl_add_u32", vXR[ks], vc, 4, vb))
    vmat, vr4, vc4 = V(202), V(203), V(204)
    E(valu("v_bfe_u32", vmat, vl, 4, 1))
    E(valu("v_bfe_u32", vr4, vl, 2, 2))
    E(valu("v_and_b32", vc4, 3, vl))
    E(valu("v_lshlrev_b32", vc4, 3, vc4))
    E(valu("v_lshrrev_b32", va, 1, vr4))
    E(valu("v_lshl_add_u32", va, vmat, 1, va))
    E(valu("v_mul_u32_u24", va, 1056, va))
    E(valu("v_and_b32", vb, 1, vr4))
    E(valu("v_lshl_add_u32", vb, vh, 2, vb))
    E(valu("v_lshl_add_u32", va, vb, 7, va))
    E(valu("v_add_u32", va, va, vc4))
    E(valu("v_add_u32", vAR, XS, va))
    E(valu("v_lshl_add_u32", vb, vh, 3, vr4))
    E(valu("v_mul_u32_u24", va, 1056, vmat))
    E(valu("v_lshl_add_u32", va, vb, 6, va))
    E(valu("v_add_u32", vPR[0], va, vc4))
    E(valu("v_add_u32", vPR[1], 65536, vPR[0]))
    E(valu("v_add_u32", vPR[2], 131072, vPR[0]))
    E(valu("v_mul_u32_u24", va, 1152, vmat))
    E(valu("v_lshl_add_u32", va, vb, 5, va))
    E(valu("v_add_u32", vLR, va, vc4))
    E(valu("v_lshrrev_b32", va, 2, vl))
    E(valu("v_mul_u32_u24", va, 9216, va))
    E(valu("v_and_b32", vb, 3, vl))
    E(valu("v_lshl_add_u32", vP, vb, 4, va))
    E(valu("v_lshrrev_b32", va, 1, vl))
    E(valu("v_mul_u32_u24", va, 9216, va))
    E(valu("v_and_b32", vb, 1, vl))
    E(valu("v_lshl_add_u32", vL, vb, 4, va))
    E(valu("v_lshrrev_b32", va, 4, vm))
    E(valu("v_mul_u32_u24", va, 147456, va))
    E(valu("v_lshl_add_u32", va, vh, 8, va))
    E(valu("v_and_b32", vb, 15, vm))
    E(valu("v_lshl_add_u32", vH, vb, 4, va))
    E(valu("v_mov_b32", vC0, hex(f2u(C0))))
    E(valu("v_mov_b32", vC1, hex(f2u(C1))))
    for i in range(4):
        E(valu("v_add_u32", vXR2[i], 65536, vXR[i]))
    E(valu("v_add_u32", vAR2, 65536, vAR))

    M = []
    gaps = []
    pre = []

    def add_mfma(ins):
        M.append(ins); gaps.append([]); pre.append([])
        return len(M) - 1

    def p1_reads(n):
        c, ks = divmod(n, 4)
        slot = c % 3
        par = n % 2
        out = []
        if slot < 2:
            xr, ar, base = vXR[ks], vAR, slot * SLOT
        else:
            xr, ar, base = vXR2[ks], vAR2, slot * SLOT - 65536
        xs = [ds_read("ds_read_b128", XF(mt, n), xr, base + mt * 4096) for mt in range(2)]
        As = []
        for u in range(4):
            af = AF1(par, u)
            for sec in range(2):
                As.append(ds_read("ds_read_b64_tr_b16", af.sub(2 * sec, 2), ar, base + ks * WBLK + sec * 256 + u * 32))
        return [xs[0], As[0], As[1], xs[1]] + As[2:]

    def su_read(unit, ks):
        af = AR4(ring[0]); ring[0] += 1
        out = []
        for sec in range(2):
            if unit in (4, 5, 6, 7):
                n = ks // 2
                blk = (alpha_addr(n) if unit < 6 else beta_addr(n)) + (ks % 2) * 2112
                addr = blk + sec * 256 + (unit % 2) * 32
                reg = vPR[addr // 65536]
                out.append(ds_read("ds_read_b64_tr_b16", af.sub(2 * sec, 2), reg, addr % 65536))
            else:
                addr = lone_addr(ks // 4) + ((ks // 2) % 2) * 2304 + (ks % 2) * 512 + sec * 128
                out.append(ds_read("ds_read_b64_tr_b16", af.sub(2 * sec, 2), vLR, addr))
        return af, out

    ring = [0]
    p1_first = {}
    for n in range(36):
        par = n % 2
        for u in range(4):
            for mt in range(2):
                c = 0 if n == 0 else ACC(u, mt)
                i = add_mfma(mfma32(ACC(u, mt), AF1(par, u), XF(mt, n), c))
                if u == 0 and mt == 0:
                    p1_first[n] = i
    BPOS = opts.get('bpos', 2)
    dma_queue = []

    def spread(groups, start, every):
        g = start
        for grp in groups:
            gaps[int(g)].extend(grp)
            g += every

    pre[0].append(need_vm(['c0']))
    pre[0].append(barrier())
    pre[0].extend(stamp())
    pre[0].extend(p1_reads(0))
    su_af = {}
    for n in range(36):
        c, ks = divmod(n, 4)
        f = p1_first[n]
        if n + 1 < 36:
            rds = p1_reads(n + 1)
            if (n + 1) % 4 == 0:
                nv = need_vm([f"c{c + 1}"]); nv.meta = 'lgkm0'
                gaps[f + BPOS - 1].extend([nv, barrier()] + stamp())
                pos = [BPOS - 1, BPOS - 1, BPOS, BPOS, BPOS + 1, BPOS + 1, BPOS + 2, BPOS + 2, BPOS + 3, BPOS + 4]
                for r, p in zip(rds, pos):
                    gaps[f + min(p, 7)].append(r)
            elif (n + 2) % 4 == 0:
                pos = [0, 0, 1, 1, 2, 2, 3, 3, 4, 4]
                for r, p in zip(rds, pos):
                    gaps[f + p].append(r)
            else:
                pos = [0, 0, 1, 1, 2, 3, 4, 5, 6, 7]
                for r, p in zip(rds, pos):
                    gaps[f + p].append(r)
        if ks == 3:
            groups = []
            if c + 3 < 9:
                groups += chunk_dmas(c + 3)
            if c == 0:
                groups += [pair_dma('a', k) for k in range(0, 3)]
            if c == 6:
                groups += [pair_dma('a', k) for k in range(3, 14)]
            if c == 7:
                groups += [pair_dma('a', k) for k in range(14, 18)] + [pair_dma('b', k) for k in range(0, 7)]
            if c < 8:
                spread(groups, f + BPOS + 1, 2)
            b_last = f
    f = p1_first[35]
    nv = need_vm([f"a{k}" for k in range(14)]); nv.meta = 'lgkm0'
    gaps[f + BPOS - 1].extend([nv, barrier()] + stamp())
    b8_gap = f + BPOS

    AHEAD = opts.get('ahead', 3)
    su = []
    for unit in range(4, 9):
        for ks in range(36):
            su.append((unit, ks))
    su_first = {}
    frag = {}
    reads = {}
    for idx, (unit, ks) in enumerate(su):
        frag[idx], reads[idx] = su_read(unit, ks)
    for idx, (unit, ks) in enumerate(su):
        s = UNIT_SET[unit]
        for mt in range(2):
            c = 0 if ks == 0 else ACC(s, mt)
            i = add_mfma(mfma32(ACC(s, mt), frag[idx], XF(mt, ks), c))
            if mt == 0:
                su_first[idx] = i
    g = b8_gap
    for idx in range(AHEAD):
        for r in reads[idx]:
            gaps[g].append(r); g += 1
    barr = {}
    def publish(tags):
        nv = need_vm(tags); nv.meta = 'lgkm0'
        return [nv, barrier()] + stamp()
    barr[28] = publish([f"a{k}" for k in range(14, 18)])
    barr[72] = publish([f"b{k}" for k in range(18)])
    barr[144] = publish([f"l{k}" for k in range(9)])
    for idx in range(AHEAD, len(su)):
        tgt = su_first[idx - AHEAD]
        if idx in barr:
            gaps[tgt].extend(barr[idx])
        gaps[tgt].append(reads[idx][0])
        gaps[tgt + 1].append(reads[idx][1])
    spread([pair_dma('b', k) for k in range(7, 18)], b8_gap + 8, 3)
    spread([lone_dma(k) for k in range(9)], su_first[72 - AHEAD] + 3, 3)

    gq = []
    hp = 0
    last_mfma_of_unit = {u: p1_first[35] + 7 for u in range(4)}
    for unit in range(4, 9):
        last_mfma_of_unit[unit] = su_first[(unit - 4) * 36 + 35] + 1
    first_mfma_of_unit = {unit: su_first[(unit - 4) * 36] for unit in range(4, 9)}
    rate = opts.get('grate', 3)
    g = len(M)
    g = p1_first[35] + 8 + 1
    cnt = 0
    tail = []
    done_gap = {}
    for unit in range(9):
        for mt in range(2):
            ops = gelu_ops(unit, mt, opts, hp); hp ^= 1
            start = last_mfma_of_unit[unit] + 2
            if g < start:
                g = start; cnt = 0
            for op in ops:
                if g >= len(M):
                    tail.append(op)
                    continue
                gaps[g].append(op)
                cnt += 1
                if cnt >= rate:
                    cnt = 0; g += 1
        done_gap[unit] = g
    for unit in range(5, 9):
        prev = unit - 5
        assert done_gap[prev] < first_mfma_of_unit[unit], (unit, done_gap[prev], first_mfma_of_unit[unit])

    for i in range(len(M)):
        for x in pre[i]: E(x)
        E(M[i])
        for x in gaps[i]: E(x)
    for i in stamp(): E(i)
    for x in tail: E(x)
    if stamps:
        for i in stamp(): E(i)
        E(wait_vm0())
        for i in stamp(): E(i)
        E(raw("s_waitcnt lgkmcnt(0)", kind='salu'))
        E(raw("s_load_dwordx2 s[6:7], s[0:1], 48", kind='salu'))
        E(raw("s_waitcnt lgkmcnt(0)", kind='salu'))
        E(raw("s_lshl_b32 s40, s2, 2", kind='salu'))
        E(raw("s_add_u32 s40, s40, s28", kind='salu'))
        E(raw("s_lshl_b32 s40, s40, 7", kind='salu'))
        E(raw("s_add_u32 s40, s40, 0x4000000", kind='salu'))
        E(raw("v_mov_b32 v0, s40"))
        E(raw("s_mov_b64 exec, 1", kind='salu'))
        for i in range(nst[0]):
            E(raw(f"s_sub_u32 s41, s{STAMP0 + 2 * i}, s{STAMP0}", kind='salu'))
            E(raw(f"v_mov_b32 v1, s41"))
            E(raw(f"global_store_dword v0, v1, s[6:7] offset:{4 * i}"))
        E(raw("s_waitcnt vmcnt(0)", kind='salu'))
    e.lines.append("L_k1_end:")
    e.out("s_endpgm")
    return e
```

```python
from asmlib import *

CH = 36864
NSLOT = 4
LDS2 = NSLOT * CH

def ACC(nt, mt): return V((nt * 2 + mt) * 4, 4)
def AFR(par, nt): return V(72 + par * 36 + nt * 4, 4)
BDEPTH = 8
def BFR(s, mt): return V(144 + ((s % BDEPTH) * 2 + mt) * 4, 4)
vD = [V(208 + i) for i in range(9)]
vTR = [V(217), V(218), V(219)]
vB = V(220)
vP = V(221)
sWd, sH, sP = S(8, 4), S(12, 4), S(16, 4)
sWave = S(28)
sDoff, sDlds, sHoff, sPoff = S(29), S(30), S(31), S(32)
sT = [S(40 + i) for i in range(8)]
STAMP0 = 48


def gen_k2(opts):
    e = Emitter(); E = e.emit
    stamps = opts.get('stamps', False)
    nst = [0]
    def stamp():
        if not stamps: return []
        i = nst[0]; nst[0] += 1
        return [raw(f"s_memtime s[{STAMP0 + 2 * i}:{STAMP0 + 2 * i + 1}]", kind='salu')]
    E(raw("s_cmp_ge_u32 s2, 256", kind='salu'))
    E(raw("s_cbranch_scc1 L_k2_end", kind='salu'))
    E(raw("s_load_dwordx2 s[8:9], s[0:1], 24", kind='salu'))
    E(raw("s_load_dwordx2 s[12:13], s[0:1], 48", kind='salu'))
    for i in stamp(): E(i)
    v0 = V(0)
    vl, va, vb, vc = V(250), V(251), V(252), V(253)
    E(valu("v_lshrrev_b32", va, 6, v0))
    E(valu("v_and_b32", vl, 63, v0))
    E(valu("v_readfirstlane_b32", sWave, va))
    sa, sb, sm, sn = S(3), S(4), S(5), S(39)
    E(salu("s_and_b32", sT[0], S(2), 7))
    E(salu("s_lshr_b32", sa, sT[0], 1))
    E(salu("s_and_b32", sb, sT[0], 1))
    E(salu("s_lshr_b32", sT[1], S(2), 3))
    E(salu("s_and_b32", sm, sT[1], 7))
    E(salu("s_lshr_b32", sn, sT[1], 3))
    E(salu("s_mul_i32", sT[0], sa, 1152, scc=False))
    E(salu("s_lshl_b32", sT[1], sWave, 5))
    E(salu("s_add_u32", sT[0], sT[0], sT[1]))
    E(salu("s_mul_i32", sT[0], sT[0], 1152, scc=False))
    E(salu("s_mul_i32", sT[1], sn, 288, scc=False))
    E(salu("s_add_u32", sDoff, sT[0], sT[1]))
    E(salu("s_mul_i32", sDlds, sWave, 9216, scc=False))
    E(salu("s_lshl_b32", sT[0], sb, 3))
    E(salu("s_add_u32", sT[0], sT[0], sm))
    E(salu("s_lshl_b32", sT[1], sT[0], 3))
    E(salu("s_lshl_b32", sT[2], sWave, 1))
    E(salu("s_add_u32", sT[1], sT[1], sT[2]))
    E(salu("s_mul_i32", sT[1], sT[1], 147456, scc=False))
    E(salu("s_mul_i32", sT[2], sa, 36 * 1024, scc=False))
    E(salu("s_add_u32", sHoff, sT[1], sT[2]))
    E(salu("s_lshl_b32", sT[0], sT[0], 2))
    E(salu("s_add_u32", sT[0], sT[0], sn))
    E(salu("s_lshl_b32", sT[0], sT[0], 2))
    E(salu("s_add_u32", sT[0], sT[0], sa))
    E(salu("s_lshl_b32", sT[0], sT[0], 2))
    E(salu("s_add_u32", sT[0], sT[0], sWave))
    E(salu("s_mul_i32", sPoff, sT[0], 18432, scc=False))
    E(salu("s_mov_b32", sT[3], 3641, scc=False))
    for i in range(9):
        E(valu("v_add_u32", va, 64 * i, vl))
        E(valu("v_mul_lo_u32", vb, va, sT[3]))
        E(valu("v_lshrrev_b32", vb, 16, vb))
        E(valu("v_mul_u32_u24", vc, 18, vb))
        E(valu("v_sub_u32", vc, va, vc))
        E(valu("v_mul_u32_u24", vb, 1152, vb))
        E(valu("v_lshl_add_u32", vD[i], vc, 4, vb))
    E(valu("v_lshlrev_b32", vB, 4, vl))
    E(raw("s_waitcnt lgkmcnt(0)", kind='salu'))
    E(salu("s_add_u32", sP.sub(0), sH.sub(0), 0x2000000))
    E(raw(f"s_addc_u32 {sP.sub(1)}, {sH.sub(1)}, 0", kind='salu'))
    for srd, nbytes in ((sWd, 5308416), (sH, 18874368), (sP, 18874368)):
        E(salu("s_and_b32", srd.sub(1), srd.sub(1), "0xffff"))
        E(salu("s_mov_b32", srd.sub(2), nbytes, scc=False))
        E(salu("s_mov_b32", srd.sub(3), "0x00020000", scc=False))

    def wd_dma(c, i):
        slot = c % NSLOT
        return [salu("s_add_u32", "m0", sDlds, slot * CH + i * 1024),
                salu("s_add_u32", sT[i % 2], sDoff, c * 128 * 1152),
                dma(vD[i], sWd, sT[i % 2], tag=f"c{c}")]

    def b_load(s, mt):
        st = sT[2 + mt]
        ld = buf_load("buffer_load_dwordx4", BFR(s, mt), vB, sH, st)
        return [salu("s_add_u32", st, sHoff, mt * 147456 + s * 1024), ld]

    for i in range(9):
        for x in wd_dma(0, i): E(x)
    for s in range(0, 4):
        for mt in range(2):
            for x in b_load(s, mt): E(x)
    for i in range(9):
        for x in wd_dma(1, i): E(x)
    for s in range(4, BDEPTH - 1):
        for mt in range(2):
            for x in b_load(s, mt): E(x)
    for i in range(9):
        for x in wd_dma(2, i): E(x)
    E(valu("v_bfe_u32", va, vl, 5, 1))
    E(valu("v_lshlrev_b32", va, 4, va))
    E(valu("v_bfe_u32", vb, vl, 4, 1))
    E(valu("v_lshl_add_u32", va, vb, 2, va))
    E(valu("v_bfe_u32", vb, vl, 2, 2))
    E(valu("v_add_u32", va, va, vb))
    E(valu("v_mul_u32_u24", va, 288, va))
    E(valu("v_and_b32", vb, 3, vl))
    E(valu("v_lshl_add_u32", vTR[0], vb, 3, va))
    E(valu("v_add_u32", vTR[1], 65536, vTR[0]))
    E(valu("v_add_u32", vTR[2], 131072, vTR[0]))

    M = []; gaps = []; pre = []
    def add(ins):
        M.append(ins); gaps.append([]); pre.append([]); return len(M) - 1
    def a_reads(s):
        c, j = divmod(s, 4)
        out = []
        for nt in range(9):
            for sec in range(2):
                addr = (c % NSLOT) * CH + j * 9216 + sec * 2304 + nt * 32
                out.append(ds_read("ds_read_b64_tr_b16", AFR(s % 2, nt).sub(2 * sec, 2), vTR[addr // 65536], addr % 65536))
        return out
    first = {}
    for s in range(36):
        for nt in range(9):
            for mt in range(2):
                c = 0 if s == 0 else ACC(nt, mt)
                i = add(mfma16(ACC(nt, mt), AFR(s % 2, nt), BFR(s, mt), c))
                if nt == 0 and mt == 0: first[s] = i
    pre[0] += [need_vm(['c0']), barrier()] + stamp() + a_reads(0)
    BPOS = 6
    for s in range(36):
        f = first[s]
        c, j = divmod(s, 4)
        if s + 1 < 36:
            rds = a_reads(s + 1)
            if j == 3:
                nv = need_vm([f"c{c + 1}"]); nv.meta = 'lgkm0'
                gaps[f + BPOS - 1] += [nv, barrier()] + stamp()
                for k, r in enumerate(rds):
                    gaps[f + min(17, BPOS - 1 + (k * (18 - BPOS)) // 18)].append(r)
            elif j == 2:
                for k, r in enumerate(rds):
                    gaps[f + (k * 12) // 18].append(r)
            else:
                for k, r in enumerate(rds):
                    gaps[f + k].append(r)
        sn_ = s + BDEPTH - 1
        if sn_ < 36:
            gaps[f + 1] += b_load(sn_, 0)
            gaps[f + 9] += b_load(sn_, 1)
        if j == 3 and c + 3 < 9 + 0 and True:
            pass
    for c in range(0, 9):
        cn = c + 3
        if cn < 9:
            g = first[4 * c] + 2
            for i in range(9):
                gaps[g] += wd_dma(cn, i)
                g += 5
    for i in range(len(M)):
        for x in pre[i]: E(x)
        E(M[i])
        for x in gaps[i]: E(x)
    for x in stamp(): E(x)
    for nt in range(9):
        for mt in range(2):
            k = nt * 2 + mt
            E(salu("s_add_u32", sT[k % 2], sPoff, k * 1024))
            E(buf_store("buffer_store_dwordx4", ACC(nt, mt), vB, sP, sT[k % 2], flags=opts.get('pflags', '')))
    if stamps:
        for x in stamp(): E(x)
        E(wait_vm0())
        for x in stamp(): E(x)
        E(raw("s_waitcnt lgkmcnt(0)", kind='salu'))
        E(raw("s_load_dwordx2 s[6:7], s[0:1], 48", kind='salu'))
        E(raw("s_waitcnt lgkmcnt(0)", kind='salu'))
        E(raw("s_lshl_b32 s40, s2, 2", kind='salu'))
        E(raw("s_add_u32 s40, s40, s28", kind='salu'))
        E(raw("s_lshl_b32 s40, s40, 7", kind='salu'))
        E(raw("s_add_u32 s40, s40, 0x4100000", kind='salu'))
        E(raw("v_mov_b32 v0, s40"))
        E(raw("s_mov_b64 exec, 1", kind='salu'))
        for i in range(nst[0]):
            E(raw(f"s_sub_u32 s41, s{STAMP0 + 2 * i}, s{STAMP0}", kind='salu'))
            E(raw(f"v_mov_b32 v1, s41"))
            E(raw(f"global_store_dword v0, v1, s[6:7] offset:{4 * i}"))
        E(raw("s_waitcnt vmcnt(0)", kind='salu'))
    e.lines.append("L_k2_end:")
    e.out("s_endpgm")
    return e


def gen_k3(opts):
    e = Emitter(); E = e.emit
    E(raw("s_cmp_ge_u32 s2, 1152", kind='salu'))
    E(raw("s_cbranch_scc1 L_k3_end", kind='salu'))
    E(raw("s_load_dwordx2 s[8:9], s[0:1], 48", kind='salu'))
    E(raw("s_load_dwordx2 s[12:13], s[0:1], 32", kind='salu'))
    va, vl = V(1), V(2)
    E(valu("v_lshrrev_b32", va, 6, V(0)))
    E(valu("v_and_b32", vl, 63, V(0)))
    E(valu("v_readfirstlane_b32", S(28), va))
    E(salu("s_lshl_b32", S(29), S(2), 2))
    E(salu("s_add_u32", S(29), S(29), S(28)))
    E(salu("s_mul_i32", S(30), S(29), 58255, scc=False))
    E(salu("s_lshr_b32", S(30), S(30), 22))
    E(salu("s_mul_i32", S(31), S(30), 72, scc=False))
    E(salu("s_sub_u32", S(31), S(29), S(31)))
    E(salu("s_mul_i32", S(32), S(31), 3641, scc=False))
    E(salu("s_lshr_b32", S(32), S(32), 16))
    E(salu("s_mul_i32", S(33), S(32), 18, scc=False))
    E(salu("s_sub_u32", S(33), S(31), S(33)))
    E(salu("s_lshl_b32", S(34), S(30), 4))
    E(salu("s_add_u32", S(34), S(34), S(32)))
    E(salu("s_mul_i32", S(34), S(34), 18432, scc=False))
    E(salu("s_lshl_b32", S(35), S(33), 10))
    E(salu("s_add_u32", S(34), S(34), S(35)))
    E(valu("v_lshlrev_b32", V(3), 4, vl))
    E(salu("s_lshr_b32", S(36), S(30), 2))
    E(salu("s_lshl_b32", S(36), S(36), 7))
    E(salu("s_lshl_b32", S(37), S(32), 5))
    E(salu("s_add_u32", S(36), S(36), S(37)))
    E(salu("s_and_b32", S(37), S(33), 1))
    E(salu("s_lshl_b32", S(37), S(37), 4))
    E(salu("s_add_u32", S(36), S(36), S(37)))
    E(salu("s_mul_i32", S(36), S(36), 1152, scc=False))
    E(salu("s_and_b32", S(37), S(30), 3))
    E(salu("s_mul_i32", S(37), S(37), 288, scc=False))
    E(salu("s_add_u32", S(36), S(36), S(37)))
    E(salu("s_lshr_b32", S(37), S(33), 1))
    E(salu("s_lshl_b32", S(37), S(37), 5))
    E(salu("s_add_u32", S(36), S(36), S(37)))
    E(valu("v_and_b32", V(4), 15, vl))
    E(valu("v_mul_u32_u24", V(4), 1152, V(4)))
    E(valu("v_lshrrev_b32", V(5), 4, vl))
    E(valu("v_lshl_add_u32", V(4), V(5), 3, V(4)))
    E(raw("s_waitcnt lgkmcnt(0)", kind='salu'))
    E(salu("s_add_u32", S(8), S(8), 0x2000000))
    E(raw("s_addc_u32 s9, s9, 0", kind='salu'))
    for srd, nbytes in ((S(8, 4), 18874368), (S(12, 4), 2359296)):
        E(salu("s_and_b32", srd.sub(1), srd.sub(1), "0xffff"))
        E(salu("s_mov_b32", srd.sub(2), nbytes, scc=False))
        E(salu("s_mov_b32", srd.sub(3), "0x00020000", scc=False))
    for a in range(4):
        E(salu("s_add_u32", S(40 + a), S(34), a * 4 * 18432))
        E(buf_load("buffer_load_dwordx4", V(8 + 4 * a, 4), V(3), S(8, 4), S(40 + a)))
    for j in range(4):
        E(valu("v_add_f32", V(8 + j), V(8 + j), V(12 + j)))
        E(valu("v_add_f32", V(16 + j), V(16 + j), V(20 + j)))
    for j in range(4):
        E(valu("v_add_f32", V(8 + j), V(8 + j), V(16 + j)))
    E(valu("v_cvt_pk_bf16_f32", V(24), V(8), V(9)))
    E(valu("v_cvt_pk_bf16_f32", V(25), V(10), V(11)))
    E(buf_store("buffer_store_dwordx2", V(24, 2), V(4), S(12, 4), S(36)))
    e.lines.append("L_k3_end:")
    e.out("s_endpgm")
    return e
```

```python
import sys, json
from k1 import gen_k1
from k2 import gen_k2, gen_k3, LDS2

HEADER = """; Kernarg layout for this problem (56 bytes, ptrs only, base s[0:1]):
"""

def kernel_text(name, e):
    return f""".globl {name}
.p2align 8
.type {name},@function
{name}:
{e.text()}
"""

def kd(name, vgpr, accum, sgpr=102):
    return f""".amdhsa_kernel {name}
  .amdhsa_next_free_vgpr {vgpr}
  .amdhsa_next_free_sgpr {sgpr}
  .amdhsa_accum_offset {accum}
  .amdhsa_group_segment_fixed_size 0
  .amdhsa_kernarg_size 56
  .amdhsa_user_sgpr_count 2
  .amdhsa_user_sgpr_kernarg_segment_ptr 1
  .amdhsa_system_sgpr_workgroup_id_x 1
.end_amdhsa_kernel
"""

def build(opts, path):
    e1 = gen_k1(opts); e2 = gen_k2(opts); e3 = gen_k3(opts)
    s = HEADER
    s += "; @launch kernel=ffn1_kernel grid=(256,1,1) block=(256,1,1) lds=163840\n"
    s += f"; @launch kernel=ffn2_kernel grid=(256,1,1) block=(256,1,1) lds={LDS2}\n"
    s += "; @launch kernel=ffn3_kernel grid=(1152,1,1) block=(256,1,1) lds=0\n"
    s += '.amdgcn_target "amdgcn-amd-amdhsa--gfx950"\n.text\n'
    s += kernel_text("ffn1_kernel", e1) + kernel_text("ffn2_kernel", e2) + kernel_text("ffn3_kernel", e3)
    s += '.section .rodata,"a"\n.p2align 6\n'
    s += kd("ffn1_kernel", 512, 256) + ".p2align 6\n" + kd("ffn2_kernel", 256, 256) + ".p2align 6\n" + kd("ffn3_kernel", 32, 32, 64)
    open(path, 'w').write(s)
    for n, e in (("k1", e1), ("k2", e2), ("k3", e3)):
        print(n, "instr stats", e.stats, "nops", e.nops_inserted, "waits", e.waits, "lines", len(e.lines))

if __name__ == "__main__":
    opts = json.loads(sys.argv[2]) if len(sys.argv) > 2 else {}
    build(opts, sys.argv[1])
```
